```python
import torch

def _softmax(x, axis=-1):
    return torch.softmax(x, dim=axis)
def _gelu(x):
    return torch.nn.functional.gelu(x, approximate="tanh")
def _silu(x):
    return torch.nn.functional.silu(x)
def _sigmoid(x):
    return torch.sigmoid(x)
def _layernorm(x, axis=-1, eps=1e-5):
    m = x.mean(dim=axis, keepdim=True)
    v = x.var(dim=axis, keepdim=True, unbiased=False)
    return (x - m) / torch.sqrt(v + eps)
def _scatter_add(tgt, idx, src, axis=0):
    return tgt.clone().index_add_(axis, idx, src)
def _segment_sum(src, seg, n):
    out = torch.zeros((n,) + src.shape[1:], dtype=src.dtype)
    return out.index_add_(0, seg, src)
def _pad(x, pw):
    flat = tuple(v for pair in reversed(pw) for v in pair)
    return torch.nn.functional.pad(x, flat)

kernel_name = 'standalone__gqa_block_cached__near_ridge'

def setup_inputs():

    _w = (lambda a: (lambda t: t.to(torch.bfloat16) if t.is_floating_point() else t)(torch.as_tensor(a)))
    B, Sq, D = 8, 256, 512
    Hq, Hkv, Sk, Dh = 32, 32, 1024, 128
    assert Hq % Hkv == 0, (Hq, Hkv)
    return {
        "x": _w((lambda *s: torch.randn(*s, dtype=torch.bfloat16) * 0.8)(B, Sq, D)),
        "k_cache": _w((lambda *s: torch.randn(*s, dtype=torch.bfloat16) * 0.8)(B, Hkv, Sk, Dh)),
        "v_cache": _w((lambda *s: torch.randn(*s, dtype=torch.bfloat16) * 0.05)(B, Hkv, Sk, Dh)),
        "wq": _w((lambda *s: torch.randn(*s, dtype=torch.bfloat16) * 0.8)(D, Hq * Dh) * (D ** -0.5)),
        "wo": _w((lambda *s: torch.randn(*s, dtype=torch.bfloat16) * 0.05)(Hq * Dh, D) * ((Hq * Dh) ** -0.5)),
    }

def reference(x, k_cache, v_cache, wq, wo):
    B, Sq, D = x.shape
    Hq, Dh = 32, 128
    Hkv = k_cache.shape[1]
    rep = Hq // Hkv
    q = (lambda x, *d: x.permute(*d))((x @ wq).reshape(B, Sq, Hq, Dh), 0, 2, 1, 3)
    k = (lambda x, n, axis: torch.repeat_interleave(x, n, dim=axis))(k_cache, rep, axis=1)
    v = (lambda x, n, axis: torch.repeat_interleave(x, n, dim=axis))(v_cache, rep, axis=1)
    scores = torch.einsum("bhqd,bhkd->bhqk", q, k) * (Dh ** -0.5)
    p = _softmax(scores, axis=-1)
    o = torch.einsum("bhqk,bhkd->bhqd", p, v)
    return (lambda x, *d: x.permute(*d))(o, 0, 2, 1, 3).reshape(B, Sq, Hq * Dh) @ wo
```

```python
import re

def vr(b, n=1):
    return f"v{b}" if n == 1 else f"v[{b}:{b+n-1}]"
def sr(b, n=1):
    return f"s{b}" if n == 1 else f"s[{b}:{b+n-1}]"

_VRE = re.compile(r'^(-|abs\()?v(\d+)\)?$')
_VRR = re.compile(r'^v\[(\d+):(\d+)\]$')
_SRE = re.compile(r'^s(\d+)$')
_SRR = re.compile(r'^s\[(\d+):(\d+)\]$')

def vregs(op):
    m = _VRE.match(op)
    if m: return [int(m.group(2))]
    m = _VRR.match(op)
    if m: return list(range(int(m.group(1)), int(m.group(2)) + 1))
    return []
def sregs(op):
    m = _SRE.match(op)
    if m: return [int(m.group(1))]
    m = _SRR.match(op)
    if m: return list(range(int(m.group(1)), int(m.group(2)) + 1))
    if op == 'vcc': return ['vcc']
    if op == 'm0': return ['m0']
    return []

TRANS = ('v_exp_f32', 'v_log_f32', 'v_rcp_f32', 'v_rsq_f32', 'v_sqrt_f32')

class Asm:
    def __init__(self):
        self.lines = []
        self.t = 0
        self.valu_w = {}
        self.trans_w = {}
        self.mfma_w = {}
        self.mfma_c = {}
        self.vs_w = {}
        self.m0_w = -100
        self.store_d = {}
        self.nnop = 0
    def raw(self, text):
        self.lines.append(text)
    def comment(self, text):
        self.lines.append('    ; ' + text)
    def label(self, name):
        self.nop(16)
        self.lines.append(name + ':')
    def nop(self, n):
        while n > 0:
            k = min(n, 16)
            self.lines.append(f'    s_nop {k-1}')
            self.t += k; n -= k; self.nnop += k
    def _need(self, when, dist):
        gap = self.t - when - 1
        if gap < dist:
            self.nop(dist - gap)
    def __call__(self, text):
        text = text.strip()
        parts = text.split(None, 1)
        mn = parts[0]
        ops = []
        if len(parts) > 1:
            ops = [o.strip() for o in re.split(r',\s*', parts[1])]
            last = ops[-1].split()
            ops[-1] = last[0]
            mods = last[1:]
        else:
            mods = []
        reads, writes, sreads, swrites = [], [], [], []
        is_valu = mn.startswith('v_')
        is_mfma = mn.startswith('v_mfma')
        is_ds = mn.startswith('ds_')
        is_vmem = mn.startswith('buffer_') or mn.startswith('global_')
        if is_mfma:
            writes = vregs(ops[0]); A = vregs(ops[1]); B = vregs(ops[2]); C = vregs(ops[3])
            passes = 8 if '32x32' in mn else 4
            dist = 12 if passes == 8 else 8
            distc = 10 if passes == 8 else 6
            for r in A + B:
                if r in self.valu_w: self._need(self.valu_w[r], 2)
                if r in self.mfma_w: self._need(self.mfma_w[r][0], 12 if self.mfma_w[r][1] == 8 else 8)
            for r in C:
                if r in self.valu_w: self._need(self.valu_w[r], 2)
                if r in self.mfma_w:
                    tw, p, db, dn = self.mfma_w[r]
                    if not (db == C[0] and dn == len(C) and p == passes):
                        self._need(tw, 10 if p == 8 else 6)
            for r in writes:
                if r in self.mfma_w and r not in C:
                    tw, p, db, dn = self.mfma_w[r]
                    self._need(tw, 10 if p == 8 else 6)
            for r in writes:
                self.mfma_w[r] = (self.t, passes, writes[0], len(writes))
                self.valu_w.pop(r, None)
            for r in C: self.mfma_c[r] = (self.t, passes)
        else:
            if is_valu:
                if mn.startswith('v_cmp'):
                    swrites = sregs(ops[0])
                    for o in ops[1:]: reads += vregs(o); sreads += sregs(o)
                elif mn in ('v_readfirstlane_b32', 'v_readlane_b32'):
                    swrites = sregs(ops[0]); reads = vregs(ops[1])
                    for r in reads:
                        if r in self.valu_w: self._need(self.valu_w[r], 1)
                elif mn.startswith('v_permlane'):
                    reads = vregs(ops[0]) + vregs(ops[1]); writes = list(reads)
                    for r in reads:
                        if r in self.valu_w: self._need(self.valu_w[r], 2)
                else:
                    writes = vregs(ops[0])
                    k = 1
                    if mn.startswith('v_add_co') or mn.startswith('v_addc_co') or mn.startswith('v_sub_co'):
                        swrites = sregs(ops[1]); k = 2
                    for o in ops[k:]: reads += vregs(o); sreads += sregs(o)
                    if mn.startswith('v_fmac') or mn.startswith('v_pk_fmac'): reads += writes
                    if mn.startswith('v_cndmask') and len(ops) == 3: sreads.append('vcc')
                for r in sreads:
                    if r in self.vs_w: self._need(self.vs_w[r], 2)
                for r in reads:
                    if r in self.trans_w and mn not in TRANS: self._need(self.trans_w[r], 1)
                for r in writes:
                    if r in self.mfma_c:
                        tc, p = self.mfma_c[r]; self._need(tc, 7 if p == 8 else 3)
                    if r in self.store_d: self._need(self.store_d[r], 2)
            elif is_ds:
                if mn.startswith('ds_read') or mn.startswith('ds_bpermute') or mn.startswith('ds_swizzle'):
                    writes = vregs(ops[0])
                    for o in ops[1:]: reads += vregs(o)
                else:
                    for o in ops: reads += vregs(o)
            elif is_vmem:
                if 'lds' in mods:
                    reads = vregs(ops[0])
                    for o in ops[1:]: sreads += sregs(o)
                    self._need(self.m0_w, 1)
                elif '_load' in mn:
                    writes = vregs(ops[0]); reads = vregs(ops[1])
                    for o in ops[2:]: sreads += sregs(o)
                else:
                    reads = vregs(ops[0]) + vregs(ops[1])
                    for o in ops[2:]: sreads += sregs(o)
                for r in sreads:
                    if r in self.vs_w: self._need(self.vs_w[r], 5)
            else:
                if ops and ops[0] == 'm0': pass
                for o in ops[1:]:
                    for r in sregs(o):
                        if r in self.vs_w: self._need(self.vs_w[r], 4)
                if mn.startswith('s_cbranch_vcc'):
                    if 'vcc' in self.vs_w: self._need(self.vs_w['vcc'], 5)
            for r in reads + writes:
                if r in self.mfma_w:
                    tw, p, db, dn = self.mfma_w[r]
                    self._need(tw, 12 if p == 8 else 8)
        self.lines.append('    ' + text)
        if not is_mfma:
            if is_valu:
                for r in writes:
                    self.valu_w[r] = self.t
                    self.mfma_w.pop(r, None)
                    if mn in TRANS: self.trans_w[r] = self.t
                    else: self.trans_w.pop(r, None)
                for r in swrites: self.vs_w[r] = self.t
            else:
                for r in writes:
                    self.mfma_w.pop(r, None); self.valu_w.pop(r, None); self.trans_w.pop(r, None)
            if is_vmem and '_store_dwordx4' in mn:
                for r in vregs(ops[0]): self.store_d[r] = self.t
            if mn.startswith('s_') and ops and ops[0] == 'm0': self.m0_w = self.t
        if mn == 's_nop':
            self.t += int(ops[0], 0) + 1
        else:
            self.t += 1
    def text(self):
        return '\n'.join(self.lines) + '\n'
```

```python
from asmlib import *

S_K, S_V, S_X, S_WQ, S_O = 4, 8, 12, 16, 20
sWAVE, sLDSW, sTILE, sCNT, sTHR, sCLAMP, sT0, sT1 = 24, 25, 26, 27, 28, 29, 30, 31
vLANE, vQI, vHF, vI, vG = 1, 2, 3, 4, 5
vT0, vT1, vT2, vT3 = 6, 7, 8, 9
vKA, vKA2, vVA, vVA2 = 10, 18, 26, 30
vDK0, vDK1, vDV, vL, vMX, vDELTA, vALPHA = 34, 35, 36, 37, 38, 41, 42
vXOFF, vOOFF = 43, 44
vQ, vO, vNM, vS, vP, vKF, vVF = 48, 80, 144, 160, 192, 208, 224
vWA, vWA2, vDW0, vDW1 = 240, 244, 248, 249
STAGE = 32768
CSCALE = 0.08838834764831845 * 1.4426950408889634

def f2u(f):
    import struct
    return struct.unpack('<I', struct.pack('<f', f))[0]

def srd(a, sbase, sptr, nbytes):
    a(f's_mov_b32 s{sbase}, s{sptr}')
    a(f's_mov_b32 s{sbase+1}, s{sptr+1}')
    a(f's_mov_b32 s{sbase+2}, {nbytes}')
    a(f's_mov_b32 s{sbase+3}, 0x00020000')

def pipelined(a, items, depth):
    n = len(items)
    def issue(i):
        for r in items[i]['reads']: a(r)
    for i in range(min(depth, n)): issue(i)
    for i in range(n):
        out = sum(len(items[j]['reads']) for j in range(i + 1, min(i + depth, n)))
        a(f's_waitcnt lgkmcnt({out})')
        a(items[i]['mfma'])
        if i + depth < n: issue(i + depth)

def dma_kv(a, stage):
    a(f's_add_u32 m0, s{sLDSW}, {stage*STAGE}')
    a(f'buffer_load_dwordx4 v{vDK0}, {sr(S_K,4)}, s{sTILE} offen lds')
    a(f's_add_u32 m0, s{sLDSW}, {stage*STAGE+1024}')
    a(f'buffer_load_dwordx4 v{vDK1}, {sr(S_K,4)}, s{sTILE} offen lds')
    a(f's_add_u32 m0, s{sLDSW}, {stage*STAGE+16384}')
    a(f'buffer_load_dwordx4 v{vDV}, {sr(S_V,4)}, s{sTILE} offen lds')
    a(f'buffer_load_dwordx4 v{vDV}, {sr(S_V,4)}, s{sTILE} offen offset:1024 lds')
    a(f's_add_u32 s{sTILE}, s{sTILE}, 16384')

def dma_wq(a, tt):
    stage, slot = tt // 2, tt % 2
    a(f's_add_u32 m0, s{sLDSW}, {stage*STAGE+slot*16384}')
    a(f's_mov_b32 s{sT0}, {tt*524288}')
    a(f'buffer_load_dwordx4 v{vDW0}, {sr(S_WQ,4)}, s{sT0} offen lds')
    a(f's_add_u32 m0, s{sLDSW}, {stage*STAGE+slot*16384+1024}')
    a(f'buffer_load_dwordx4 v{vDW1}, {sr(S_WQ,4)}, s{sT0} offen lds')

def xload(a, stage):
    buf = 160 + (stage % 2) * 32
    for k in range(8):
        a(f'buffer_load_dwordx4 {vr(buf+4*k,4)}, v{vXOFF}, {sr(S_X,4)}, 0 offen offset:{stage*256+k*32}')

def gen_k1(a):
    a('s_cmp_ge_u32 s2, 256')
    a('s_cbranch_scc1 K1_done')
    a('s_load_dwordx8 s[32:39], s[0:1], 0')
    a('s_load_dwordx2 s[40:41], s[0:1], 56')
    a(f'v_and_b32 v{vLANE}, 63, v0')
    a(f'v_lshrrev_b32 v{vT0}, 6, v0')
    a(f'v_readfirstlane_b32 s{sWAVE}, v{vT0}')
    a(f'v_and_b32 v{vQI}, 31, v{vLANE}')
    a(f'v_lshrrev_b32 v{vHF}, 5, v{vLANE}')
    a(f'v_and_b32 v{vI}, 15, v{vLANE}')
    a(f'v_lshrrev_b32 v{vG}, 4, v{vLANE}')
    a('s_waitcnt lgkmcnt(0)')
    a(f's_lshl_b32 s{sT0}, s2, 18')
    a(f's_lshr_b32 s{sT1}, s2, 14')
    a(f's_add_u32 s34, s34, s{sT0}'); a(f's_addc_u32 s35, s35, s{sT1}')
    a(f's_add_u32 s36, s36, s{sT0}'); a(f's_addc_u32 s37, s37, s{sT1}')
    srd(a, S_X, 32, 8*256*512*2)
    srd(a, S_K, 34, 262144)
    srd(a, S_V, 36, 262144)
    srd(a, S_WQ, 38, 512*4096*2)
    srd(a, S_O, 40, 2048*4096*2)
    a(f's_lshl_b32 s{sLDSW}, s{sWAVE}, 11')
    a(f's_mov_b32 s{sTILE}, 0')
    a(f'v_and_b32 v{vT0}, 15, v{vQI}')
    a(f'v_xor_b32 v{vT0}, v{vT0}, v{vHF}')
    a(f'v_lshlrev_b32 v{vT1}, 8, v{vQI}')
    for s in range(8):
        a(f'v_xor_b32 v{vT2}, {2*s}, v{vT0}')
        a(f'v_lshl_add_u32 v{vKA+s}, v{vT2}, 4, v{vT1}')
        a(f'v_add_u32 v{vKA2+s}, 0x10000, v{vKA+s}')
    a(f'v_lshrrev_b32 v{vT0}, 2, v{vI}')
    a(f'v_lshl_add_u32 v{vT1}, v{vHF}, 2, v{vT0}')
    a(f'v_lshlrev_b32 v{vT1}, 8, v{vT1}')
    a(f'v_and_b32 v{vT2}, 1, v{vG}')
    a(f'v_lshlrev_b32 v{vT2}, 5, v{vT2}')
    a(f'v_add_u32 v{vT1}, v{vT1}, v{vT2}')
    a(f'v_and_b32 v{vT2}, 3, v{vI}')
    a(f'v_lshlrev_b32 v{vT2}, 3, v{vT2}')
    a(f'v_add_u32 v{vT1}, v{vT1}, v{vT2}')
    for mt in range(4):
        a(f'v_xor_b32 v{vT2}, {mt}, v{vT0}')
        a(f'v_lshl_add_u32 v{vVA+mt}, v{vT2}, 6, v{vT1}')
        a(f'v_add_u32 v{vVA2+mt}, 0x10000, v{vVA+mt}')
        a(f'v_lshl_add_u32 v{vWA+mt}, v{vHF}, 10, v{vVA+mt}')
        a(f'v_add_u32 v{vWA2+mt}, 0x10000, v{vWA+mt}')
    a(f's_and_b32 s{sT0}, s{sWAVE}, 1')
    a(f's_lshl_b32 s{sT0}, s{sT0}, 3')
    a(f's_lshl_b32 s{sT1}, s{sWAVE}, 3')
    for j, vd in ((0, vDK0), (1, vDK1)):
        a(f'v_add_u32 v{vT0}, s{sT0}, v{vG}')
        if j: a(f'v_add_u32 v{vT0}, 4, v{vT0}')
        a(f'v_xor_b32 v{vT0}, v{vT0}, v{vI}')
        a(f'v_add_u32 v{vT1}, s{sT1}, v{vG}')
        if j: a(f'v_add_u32 v{vT1}, 4, v{vT1}')
        a(f'v_lshlrev_b32 v{vT1}, 8, v{vT1}')
        a(f'v_lshl_add_u32 v{vd}, v{vT0}, 4, v{vT1}')
    a(f'v_lshlrev_b32 v{vT0}, 2, v{vG}')
    a(f'v_xor_b32 v{vT0}, v{vT0}, v{vI}')
    a(f'v_add_u32 v{vT1}, s{sT1}, v{vG}')
    a(f'v_lshlrev_b32 v{vT2}, 8, v{vT1}')
    a(f'v_lshl_add_u32 v{vDV}, v{vT0}, 4, v{vT2}')
    a(f's_and_b32 s{sT0}, s2, 31')
    a(f's_lshl_b32 s{sT0}, s{sT0}, 8')
    a(f'v_lshlrev_b32 v{vT2}, 13, v{vT1}')
    a(f'v_lshl_add_u32 v{vDW0}, v{vT0}, 4, v{vT2}')
    a(f'v_add_u32 v{vDW0}, s{sT0}, v{vDW0}')
    a(f'v_add_u32 v{vDW1}, 0x8000, v{vDW0}')
    a(f's_lshr_b32 s{sT0}, s2, 5')
    a(f's_lshl_b32 s{sT0}, s{sT0}, 8')
    a(f's_lshl_b32 s{sT1}, s{sWAVE}, 5')
    a(f's_add_u32 s{sT0}, s{sT0}, s{sT1}')
    a(f'v_add_u32 v{vT0}, s{sT0}, v{vQI}')
    a(f'v_lshlrev_b32 v{vT1}, 10, v{vT0}')
    a(f'v_lshl_add_u32 v{vXOFF}, v{vHF}, 4, v{vT1}')
    a(f's_and_b32 s{sT1}, s2, 31')
    a(f's_lshl_b32 s{sT1}, s{sT1}, 8')
    a(f'v_lshlrev_b32 v{vT1}, 13, v{vT0}')
    a(f'v_lshl_add_u32 v{vOOFF}, v{vHF}, 4, v{vT1}')
    a(f'v_add_u32 v{vOOFF}, s{sT1}, v{vOOFF}')
    xload(a, 0); dma_wq(a, 0); dma_wq(a, 1)
    xload(a, 1); dma_wq(a, 2); dma_wq(a, 3)
    for tt in range(4, 8): dma_wq(a, tt)
    for r in range(64): a(f'v_mov_b32 v{vO+r}, 0')
    waits = [20, 20, 16, 8]
    for st in range(4):
        a(f's_waitcnt vmcnt({waits[st]})')
        a('s_barrier')
        items = []
        xb = 160 + (st % 2) * 32
        wa = vWA if st < 2 else vWA2
        for slot in range(2):
            for ks in range(4):
                for mt in range(4):
                    n = len(items); fb = vVF + (n % 4) * 4
                    off = (st % 2) * STAGE + slot * 16384 + ks * 4096
                    items.append(dict(
                        reads=[f'ds_read_b64_tr_b16 {vr(fb,2)}, v{wa+mt} offset:{off}',
                               f'ds_read_b64_tr_b16 {vr(fb+2,2)}, v{wa+mt} offset:{off+1024}'],
                        mfma=f'v_mfma_f32_32x32x16_bf16 {vr(vO+16*mt,16)}, {vr(fb,4)}, {vr(xb+(slot*4+ks)*4,4)}, {vr(vO+16*mt,16)}'))
        pipelined(a, items, 4)
        a('s_barrier')
        if st < 2: xload(a, st + 2)
        if st < 3: dma_kv(a, st)
    a(f's_mov_b32 s{sT0}, {f2u(CSCALE):#x}')
    for r in range(64): a(f'v_mul_f32 v{vO+r}, s{sT0}, v{vO+r}')
    for k8 in range(8):
        for p in range(4):
            a(f'v_cvt_pk_bf16_f32 v{vQ+4*k8+p}, v{vO+8*k8+2*p}, v{vO+8*k8+2*p+1}')
        a(f'v_permlane32_swap_b32 v{vQ+4*k8}, v{vQ+4*k8+2}')
        a(f'v_permlane32_swap_b32 v{vQ+4*k8+1}, v{vQ+4*k8+3}')
    for r in range(64): a(f'v_mov_b32 v{vO+r}, 0')
    for r in range(16): a(f'v_mov_b32 v{vNM+r}, 0')
    a(f'v_mov_b32 v{vL}, 0')
    a(f's_mov_b32 s{sTHR}, 0xff800000')
    a(f's_mov_b32 s{sCLAMP}, 0xff800000')
    a(f's_mov_b32 s{sCNT}, 0')
    a.label('K1_loop')
    for st in range(4):
        ka = vKA if st < 2 else vKA2
        va = vVA if st < 2 else vVA2
        so = (st % 2) * STAGE
        a('s_waitcnt vmcnt(8)')
        a('s_barrier')
        dma_kv(a, (st + 3) % 4)
        items = []
        for m2 in range(2):
            for s in range(8):
                n = len(items); fb = vKF + (n % 4) * 4
                c = vNM if s == 0 else vS + 16 * m2
                items.append(dict(reads=[f'ds_read_b128 {vr(fb,4)}, v{ka+s} offset:{so+m2*8192}'],
                    mfma=f'v_mfma_f32_32x32x16_bf16 {vr(vS+16*m2,16)}, {vr(fb,4)}, {vr(vQ+4*s,4)}, {vr(c,16)}'))
        pipelined(a, items, 4)
        a(f'v_max3_f32 v{vMX}, v{vS}, v{vS+1}, v{vS+2}')
        for r in range(3, 31, 2):
            a(f'v_max3_f32 v{vMX}, v{vMX}, v{vS+r}, v{vS+r+1}')
        a(f'v_max_f32 v{vMX}, v{vMX}, v{vS+31}')
        a(f'v_cmp_lt_f32 vcc, s{sTHR}, v{vMX}')
        a(f's_cbranch_vccz K1_norescale{st}')
        a(f'v_mov_b32 v{vT0}, v{vMX}')
        a(f'v_mov_b32 v{vT1}, v{vMX}')
        a(f'v_permlane32_swap_b32 v{vT0}, v{vT1}')
        a(f'v_max_f32 v{vDELTA}, v{vT0}, v{vT1}')
        a(f'v_max_f32 v{vDELTA}, s{sCLAMP}, v{vDELTA}')
        a(f'v_sub_f32 v{vALPHA}, 0, v{vDELTA}')
        a(f'v_min_f32 v{vALPHA}, 0x42c80000, v{vALPHA}')
        a(f'v_exp_f32 v{vALPHA}, v{vALPHA}')
        for r in range(32): a(f'v_sub_f32 v{vS+r}, v{vS+r}, v{vDELTA}')
        for r in range(16): a(f'v_sub_f32 v{vNM+r}, v{vNM+r}, v{vDELTA}')
        a(f'v_mul_f32 v{vL}, v{vL}, v{vALPHA}')
        for r in range(64): a(f'v_mul_f32 v{vO+r}, v{vO+r}, v{vALPHA}')
        a.label(f'K1_norescale{st}')
        a(f's_mov_b32 s{sTHR}, 0x41000000')
        a(f's_mov_b32 s{sCLAMP}, 0')
        for r in range(32): a(f'v_exp_f32 v{vS+r}, v{vS+r}')
        for r in range(32): a(f'v_add_f32 v{vL}, v{vL}, v{vS+r}')
        for p in range(16): a(f'v_cvt_pk_bf16_f32 v{vP+p}, v{vS+2*p}, v{vS+2*p+1}')
        items = []
        for sub in range(2):
            for kk in range(2):
                for mt in range(4):
                    n = len(items); fb = vVF + (n % 4) * 4
                    off = so + 16384 + (32 * sub + 16 * kk) * 256
                    items.append(dict(
                        reads=[f'ds_read_b64_tr_b16 {vr(fb,2)}, v{va+mt} offset:{off}',
                               f'ds_read_b64_tr_b16 {vr(fb+2,2)}, v{va+mt} offset:{off+2048}'],
                        mfma=f'v_mfma_f32_32x32x16_bf16 {vr(vO+16*mt,16)}, {vr(fb,4)}, {vr(vP+(sub*2+kk)*4,4)}, {vr(vO+16*mt,16)}'))
        pipelined(a, items, 4)
    a(f's_add_u32 s{sCNT}, s{sCNT}, 1')
    a(f's_cmp_lt_u32 s{sCNT}, 4')
    a('s_cbranch_scc1 K1_loop')
    a(f'v_mov_b32 v{vT0}, v{vL}')
    a(f'v_mov_b32 v{vT1}, v{vL}')
    a(f'v_permlane32_swap_b32 v{vT0}, v{vT1}')
    a(f'v_add_f32 v{vT0}, v{vT0}, v{vT1}')
    a(f'v_rcp_f32 v{vT0}, v{vT0}')
    for r in range(64): a(f'v_mul_f32 v{vO+r}, v{vO+r}, v{vT0}')
    for k8 in range(8):
        for p in range(4):
            a(f'v_cvt_pk_bf16_f32 v{vS+4*k8+p}, v{vO+8*k8+2*p}, v{vO+8*k8+2*p+1}')
        a(f'v_permlane32_swap_b32 v{vS+4*k8}, v{vS+4*k8+2}')
        a(f'v_permlane32_swap_b32 v{vS+4*k8+1}, v{vS+4*k8+3}')
        a(f'buffer_store_dwordx4 {vr(vS+4*k8,4)}, v{vOOFF}, {sr(S_O,4)}, 0 offen offset:{32*k8}')
    a('s_waitcnt vmcnt(0)')
    a.lines.append('K1_done:')
    a('s_endpgm')

KD = '''.section .rodata,"a"
.p2align 6
.amdhsa_kernel {name}
  .amdhsa_next_free_vgpr {vgpr}
  .amdhsa_next_free_sgpr 96
  .amdhsa_accum_offset {acc}
  .amdhsa_group_segment_fixed_size 0
  .amdhsa_kernarg_size 64
  .amdhsa_user_sgpr_count 2
  .amdhsa_user_sgpr_kernarg_segment_ptr 1
  .amdhsa_system_sgpr_workgroup_id_x 1
.end_amdhsa_kernel
'''

def kernel_text(name, body):
    return f'''.text
.globl {name}
.p2align 8
.type {name},@function
{name}:
{body}'''

if __name__ == '__main__':
    a = Asm(); gen_k1(a)
    hdr = '; @launch kernel=attn_kernel grid=(256,1,1) block=(512,1,1) lds=131072\n.amdgcn_target "amdgcn-amd-amdhsa--gfx950"\n'
    open('k1.s', 'w').write(hdr + kernel_text('attn_kernel', a.text()) + KD.format(name='attn_kernel', vgpr=256, acc=256))
    print('nops', a.nnop, 'lines', len(a.lines))
```

```python
from asmlib import *
from k1 import srd, pipelined, KD, kernel_text

S_A, S_W, S_OUT = 4, 8, 12
sWAVE, sWN, sWQ, sWK, sLDSW, sKO, sKW, sCNT, sT0, sT1 = 16, 17, 18, 19, 20, 21, 22, 23, 24, 25
vLANE, vQI, vHF, vI, vG = 1, 2, 3, 4, 5
vT0, vT1, vT2 = 6, 7, 8
vBA = 10
vAA = 18
vDO0, vDO1, vDW0, vDW1 = 20, 21, 22, 23
vOOFF, vRED = 24, 25
vACC = 32
vAF, vBF = 48, 64
STAGE = 32768

def dma(a, stage):
    a(f's_add_u32 m0, s{sLDSW}, {stage*STAGE}')
    a(f'buffer_load_dwordx4 v{vDO0}, {sr(S_A,4)}, s{sKO} offen lds')
    a(f's_add_u32 m0, s{sLDSW}, {stage*STAGE+1024}')
    a(f'buffer_load_dwordx4 v{vDO1}, {sr(S_A,4)}, s{sKO} offen lds')
    a(f's_add_u32 m0, s{sLDSW}, {stage*STAGE+16384}')
    a(f'buffer_load_dwordx4 v{vDW0}, {sr(S_W,4)}, s{sKW} offen lds')
    a(f's_add_u32 m0, s{sLDSW}, {stage*STAGE+16384+1024}')
    a(f'buffer_load_dwordx4 v{vDW1}, {sr(S_W,4)}, s{sKW} offen lds')
    a(f's_add_u32 s{sKO}, s{sKO}, 256')
    a(f's_add_u32 s{sKW}, s{sKW}, {128*1024}')

def gen_k2(a):
    a('s_cmp_ge_u32 s2, 256')
    a('s_cbranch_scc1 K2_done')
    a('s_load_dwordx2 s[32:33], s[0:1], 32')
    a('s_load_dwordx2 s[34:35], s[0:1], 40')
    a('s_load_dwordx2 s[36:37], s[0:1], 56')
    a(f'v_and_b32 v{vLANE}, 63, v0')
    a(f'v_lshrrev_b32 v{vT0}, 6, v0')
    a(f'v_readfirstlane_b32 s{sWAVE}, v{vT0}')
    a(f'v_and_b32 v{vQI}, 31, v{vLANE}')
    a(f'v_lshrrev_b32 v{vHF}, 5, v{vLANE}')
    a(f'v_and_b32 v{vI}, 15, v{vLANE}')
    a(f'v_lshrrev_b32 v{vG}, 4, v{vLANE}')
    a('s_waitcnt lgkmcnt(0)')
    srd(a, S_A, 36, 2048*4096*2)
    srd(a, S_W, 32, 4096*512*2)
    srd(a, S_OUT, 34, 2048*512*2)
    a(f's_and_b32 s{sWN}, s{sWAVE}, 1')
    a(f's_lshr_b32 s{sWQ}, s{sWAVE}, 1')
    a(f's_and_b32 s{sWQ}, s{sWQ}, 1')
    a(f's_lshr_b32 s{sWK}, s{sWAVE}, 2')
    a(f's_lshl_b32 s{sLDSW}, s{sWAVE}, 11')
    a('s_and_b32 s26, s2, 31')
    a('s_lshr_b32 s27, s2, 5')
    a(f's_lshl_b32 s{sT0}, s{sWQ}, 5')
    a(f'v_add_u32 v{vT0}, s{sT0}, v{vQI}')
    a(f'v_lshlrev_b32 v{vT1}, 8, v{vT0}')
    a(f'v_and_b32 v{vT0}, 15, v{vQI}')
    a(f'v_xor_b32 v{vT0}, v{vT0}, v{vHF}')
    a(f's_lshl_b32 s{sT0}, s{sWK}, 3')
    a(f'v_xor_b32 v{vT0}, s{sT0}, v{vT0}')
    for ks in range(4):
        a(f'v_xor_b32 v{vT2}, {2*ks}, v{vT0}')
        a(f'v_lshl_add_u32 v{vBA+ks}, v{vT2}, 4, v{vT1}')
        a(f'v_add_u32 v{vBA+4+ks}, 0x10000, v{vBA+ks}')
    a(f'v_lshrrev_b32 v{vT0}, 2, v{vI}')
    a(f'v_lshl_add_u32 v{vT0}, v{vHF}, 3, v{vT0}')
    a(f's_lshl_b32 s{sT0}, s{sWK}, 6')
    a(f'v_add_u32 v{vT0}, s{sT0}, v{vT0}')
    a(f'v_lshlrev_b32 v{vT0}, 7, v{vT0}')
    a(f'v_lshrrev_b32 v{vT1}, 3, v{vI}')
    a(f'v_xor_b32 v{vT1}, s{sWN}, v{vT1}')
    a(f'v_lshl_add_u32 v{vT0}, v{vT1}, 6, v{vT0}')
    a(f'v_and_b32 v{vT1}, 1, v{vG}')
    a(f'v_lshl_add_u32 v{vT0}, v{vT1}, 5, v{vT0}')
    a(f'v_and_b32 v{vT1}, 3, v{vI}')
    a(f'v_lshl_add_u32 v{vAA}, v{vT1}, 3, v{vT0}')
    a(f'v_add_u32 v{vAA}, 16384, v{vAA}')
    a(f'v_add_u32 v{vAA+1}, 0x10000, v{vAA}')
    a(f's_and_b32 s{sT0}, s{sWAVE}, 1')
    a(f's_lshl_b32 s{sT0}, s{sT0}, 3')
    a(f's_lshl_b32 s{sT1}, s{sWAVE}, 3')
    a(f's_lshl_b32 s28, s26, 6')
    a(f's_add_u32 s{sT1}, s{sT1}, s28')
    for j, vd in ((0, vDO0), (1, vDO1)):
        a(f'v_add_u32 v{vT0}, s{sT0}, v{vG}')
        if j: a(f'v_add_u32 v{vT0}, 4, v{vT0}')
        a(f'v_xor_b32 v{vT0}, v{vT0}, v{vI}')
        a(f'v_add_u32 v{vT1}, s{sT1}, v{vG}')
        if j: a(f'v_add_u32 v{vT1}, 4, v{vT1}')
        a(f'v_lshlrev_b32 v{vT1}, 13, v{vT1}')
        a(f'v_lshl_add_u32 v{vd}, v{vT0}, 4, v{vT1}')
    a(f'v_lshrrev_b32 v{vT0}, 3, v{vLANE}')
    a(f'v_and_b32 v{vT1}, 7, v{vLANE}')
    a(f'v_lshrrev_b32 v{vT2}, 1, v{vT0}')
    a(f'v_and_b32 v{vT2}, 1, v{vT2}')
    a(f'v_lshlrev_b32 v{vT2}, 2, v{vT2}')
    a(f'v_xor_b32 v{vT1}, v{vT1}, v{vT2}')
    a(f's_lshl_b32 s{sT0}, s{sWAVE}, 4')
    a(f'v_add_u32 v{vT0}, s{sT0}, v{vT0}')
    a(f'v_lshlrev_b32 v{vT0}, 10, v{vT0}')
    a(f'v_lshl_add_u32 v{vDW0}, v{vT1}, 4, v{vT0}')
    a(f's_lshl_b32 s{sT0}, s27, 7')
    a(f'v_add_u32 v{vDW0}, s{sT0}, v{vDW0}')
    a(f'v_add_u32 v{vDW1}, 8192, v{vDW0}')
    a(f's_lshl_b32 s{sT0}, s{sWQ}, 5')
    a(f's_add_u32 s{sT0}, s{sT0}, s28')
    a(f'v_add_u32 v{vT0}, s{sT0}, v{vQI}')
    a(f'v_lshlrev_b32 v{vT0}, 10, v{vT0}')
    a(f'v_lshl_add_u32 v{vOOFF}, v{vHF}, 4, v{vT0}')
    a(f's_lshl_b32 s{sT0}, s27, 7')
    a(f's_lshl_b32 s{sT1}, s{sWN}, 6')
    a(f's_add_u32 s{sT0}, s{sT0}, s{sT1}')
    a(f'v_add_u32 v{vOOFF}, s{sT0}, v{vOOFF}')
    a(f's_and_b32 s{sT0}, s{sWAVE}, 3')
    a(f's_lshl_b32 s{sT0}, s{sT0}, 12')
    a(f'v_lshlrev_b32 v{vRED}, 6, v{vLANE}')
    a(f'v_add_u32 v{vRED}, s{sT0}, v{vRED}')
    a(f's_mov_b32 s{sKO}, 0'); a(f's_mov_b32 s{sKW}, 0')
    for r in range(16): a(f'v_mov_b32 v{vACC+r}, 0')
    for st in range(3): dma(a, st)
    a(f's_mov_b32 s{sCNT}, 0')
    a.label('K2_loop')
    for st in range(4):
        so = (st % 2) * STAGE
        ba = vBA if st < 2 else vBA + 4
        aa = vAA if st < 2 else vAA + 1
        a('s_waitcnt vmcnt(8)')
        a('s_barrier')
        dma(a, (st + 3) % 4)
        items = []
        for ks in range(4):
            fa = vAF + ks * 4; fb = vBF + ks * 4
            off = so + ks * 2048
            items.append(dict(reads=[f'ds_read_b64_tr_b16 {vr(fa,2)}, v{aa} offset:{off}',
                                     f'ds_read_b64_tr_b16 {vr(fa+2,2)}, v{aa} offset:{off+512}',
                                     f'ds_read_b128 {vr(fb,4)}, v{ba+ks} offset:{so}'],
                 mfma=f'v_mfma_f32_32x32x16_bf16 {vr(vACC,16)}, {vr(fa,4)}, {vr(fb,4)}, {vr(vACC,16)}'))
        pipelined(a, items, 4)
    a(f's_add_u32 s{sCNT}, s{sCNT}, 1')
    a(f's_cmp_lt_u32 s{sCNT}, 8')
    a('s_cbranch_scc1 K2_loop')
    a('s_waitcnt vmcnt(0)')
    a('s_barrier')
    a(f's_cmp_eq_u32 s{sWK}, 0')
    a('s_cbranch_scc1 K2_red0')
    for j in range(4):
        a(f'ds_write_b128 v{vRED}, {vr(vACC+4*j,4)} offset:{16*j}')
    a('s_waitcnt lgkmcnt(0)')
    a('s_barrier')
    a('s_branch K2_done')
    a.label('K2_red0')
    a('s_barrier')
    for j in range(4):
        a(f'ds_read_b128 {vr(vAF+4*j,4)}, v{vRED} offset:{16*j}')
    a('s_waitcnt lgkmcnt(0)')
    for r in range(16): a(f'v_add_f32 v{vACC+r}, v{vACC+r}, v{vAF+r}')
    for k8 in range(2):
        for p in range(4):
            a(f'v_cvt_pk_bf16_f32 v{vBF+4*k8+p}, v{vACC+8*k8+2*p}, v{vACC+8*k8+2*p+1}')
        a(f'v_permlane32_swap_b32 v{vBF+4*k8}, v{vBF+4*k8+2}')
        a(f'v_permlane32_swap_b32 v{vBF+4*k8+1}, v{vBF+4*k8+3}')
        a(f'buffer_store_dwordx4 {vr(vBF+4*k8,4)}, v{vOOFF}, {sr(S_OUT,4)}, 0 offen offset:{32*k8}')
    a('s_waitcnt vmcnt(0)')
    a.lines.append('K2_done:')
    a('s_endpgm')
```

```python
import sys
from asmlib import *
import k1, k2
import importlib
def build(path):
    a1 = Asm(); k1.gen_k1(a1)
    a2 = Asm(); k2.gen_k2(a2)
    hdr = open('standalone__gqa_block_cached__near_ridge.s.ref').read().split('; Override launch')[0]
    hdr += '; @launch kernel=attn_kernel grid=(256,1,1) block=(512,1,1) lds=131072\n'
    hdr += '; @launch kernel=oproj_kernel grid=(256,1,1) block=(512,1,1) lds=131072\n'
    hdr += '.amdgcn_target "amdgcn-amd-amdhsa--gfx950"\n'
    txt = hdr + k1.kernel_text('attn_kernel', a1.text()) + k1.kernel_text('oproj_kernel', a2.text())
    txt += k1.KD.format(name='attn_kernel', vgpr=256, acc=256) + k1.KD.format(name='oproj_kernel', vgpr=80, acc=80).replace('.section .rodata,"a"\n', '')
    open(path, 'w').write(txt)
    print('k1 nops', a1.nnop, 'lines', len(a1.lines), 'k2 lines', len(a2.lines))
build(sys.argv[1] if len(sys.argv) > 1 else 'standalone__gqa_block_cached__near_ridge.s')
```

```python
import sys
from asmlib import *
import k1, k2
import importlib
def build(path, k1mod='k1', k2mod='k2'):
    m1 = importlib.import_module(k1mod); m2 = importlib.import_module(k2mod)
    a1 = Asm(); m1.gen_k1(a1)
    a2 = Asm(); m2.gen_k2(a2)
    K2V = 80 if k2mod == 'k2' else 208
    hdr = open('standalone__gqa_block_cached__near_ridge.s.ref').read().split('; Override launch')[0]
    hdr += '; @launch kernel=attn_kernel grid=(256,1,1) block=(512,1,1) lds=163840\n'
    hdr += '; @launch kernel=oproj_kernel grid=(256,1,1) block=(512,1,1) lds=131072\n'
    hdr += '.amdgcn_target "amdgcn-amd-amdhsa--gfx950"\n'
    txt = hdr + k1.kernel_text('attn_kernel', a1.text()) + k1.kernel_text('oproj_kernel', a2.text())
    txt += k1.KD.format(name='attn_kernel', vgpr=256, acc=256) + k1.KD.format(name='oproj_kernel', vgpr=K2V, acc=K2V).replace('.section .rodata,"a"\n', '')
    open(path, 'w').write(txt)
    print('k1 nops', a1.nnop, 'lines', len(a1.lines), 'k2 lines', len(a2.lines))
if __name__ == '__main__':
    build(sys.argv[1], *(sys.argv[2:]))
```

```python
import sys
from asmlib import *
import k1
from k1 import srd
def gen(a, shape, iters=600):
    a('s_cmp_ge_u32 s2, 256')
    a('s_cbranch_scc1 MB_done')
    a('s_load_dwordx2 s[32:33], s[0:1], 8')
    a('s_load_dwordx2 s[34:35], s[0:1], 56')
    a('v_and_b32 v1, 63, v0')
    a('v_lshrrev_b32 v2, 6, v0')
    a('v_readfirstlane_b32 s16, v2')
    a('s_waitcnt lgkmcnt(0)')
    srd(a, 4, 32, 1<<26)
    srd(a, 8, 34, 1<<24)
    a('v_lshlrev_b32 v3, 4, v1')
    a('s_lshl_b32 s17, s16, 13')
    a('v_add_u32 v3, s17, v3')
    a('s_lshl_b32 s18, s2, 16')
    for j in range(8):
        a(f's_add_u32 m0, s17, {j*1024}')
        a(f's_add_u32 s19, s18, {j*1024}')
        a('buffer_load_dwordx4 v3, s[4:7], s19 offen lds')
    for j in range(4):
        a(f'buffer_load_dwordx4 v[{16+4*j}:{19+4*j}], v3, s[4:7], s18 offen offset:{j*1024}')
    a('s_waitcnt vmcnt(0)')
    a('s_barrier')
    for r in range(64): a(f'v_mov_b32 v{64+r}, 0')
    a('v_lshlrev_b32 v4, 4, v1')
    a(f's_mov_b32 s20, 0')
    a.label('MB_loop')
    n = 16
    for grp in range(4):
        for i in range(4):
            a(f'ds_read_b128 v[{32+4*i}:{35+4*i}], v4 offset:{(grp*4+i)*4096 % 65536}')
        for i in range(4):
            a(f's_waitcnt lgkmcnt({3-i})')
            if shape == 32:
                a(f'v_mfma_f32_32x32x16_bf16 v[{64+16*i}:{79+16*i}], v[{32+4*i}:{35+4*i}], v[{16+4*(i%2)}:{19+4*(i%2)}], v[{64+16*i}:{79+16*i}]')
            else:
                for q in range(2):
                    acc = 64 + 8*i + 4*q
                    a(f'v_mfma_f32_16x16x32_bf16 v[{acc}:{acc+3}], v[{32+4*i}:{35+4*i}], v[{16+4*q+8*(i%2)}:{19+4*q+8*(i%2)}], v[{acc}:{acc+3}]')
    a('s_add_u32 s20, s20, 1')
    a(f's_cmp_lt_u32 s20, {iters}')
    a('s_cbranch_scc1 MB_loop')
    a('v_lshlrev_b32 v5, 2, v0')
    a('s_lshl_b32 s18, s2, 11')
    for r in range(64): a(f'v_add_f32 v64, v64, v{64+r}')
    a('buffer_store_dword v64, v5, s[8:11], s18 offen')
    a('s_waitcnt vmcnt(0)')
    a.lines.append('MB_done:')
    a('s_endpgm')
for shape in (32, 16):
    a = Asm(); gen(a, shape)
    hdr = open('standalone__gqa_block_cached__near_ridge.s.ref').read().split('; Override launch')[0]
    hdr += '; @launch kernel=mb_kernel grid=(256,1,1) block=(512,1,1) lds=65536\n'
    hdr += '.amdgcn_target "amdgcn-amd-amdhsa--gfx950"\n'
    txt = hdr + k1.kernel_text('mb_kernel', a.text()) + k1.KD.format(name='mb_kernel', vgpr=128, acc=128)
    open(f'mb{shape}.s', 'w').write(txt)
```
